```python
import torch

def _softmax(x, axis=-1):
    return torch.softmax(x, dim=axis)
def _gelu(x):
    return torch.nn.functional.gelu(x, approximate="tanh")
def _silu(x):
    return torch.nn.functional.silu(x)
def _sigmoid(x):
    return torch.sigmoid(x)
def _layernorm(x, axis=-1, eps=1e-5):
    m = x.mean(dim=axis, keepdim=True)
    v = x.var(dim=axis, keepdim=True, unbiased=False)
    return (x - m) / torch.sqrt(v + eps)
def _scatter_add(tgt, idx, src, axis=0):
    return tgt.clone().index_add_(axis, idx, src)
def _segment_sum(src, seg, n):
    out = torch.zeros((n,) + src.shape[1:], dtype=src.dtype)
    return out.index_add_(0, seg, src)
def _pad(x, pw):
    flat = tuple(v for pair in reversed(pw) for v in pair)
    return torch.nn.functional.pad(x, flat)

kernel_name = 'sequential_preLN__linear_attn_block__glu_gated_glu__prompt'

def setup_inputs():

    _w = (lambda a: (lambda t: t.to(torch.bfloat16) if t.is_floating_point() else t)(torch.as_tensor(a)))
    def _A_setup():
        B, S, D = 1, 2048, 1024
        return {
            "x": _w((lambda *s: torch.randn(*s, dtype=torch.bfloat16) * 0.05)(B, S, D)),
            "wqkv": _w((lambda *s: torch.randn(*s, dtype=torch.bfloat16) * 0.05)(D, 3 * D)),
            "wo": _w((lambda *s: torch.randn(*s, dtype=torch.bfloat16) * 0.05)(D, D)),
        }
    _A_in = _A_setup()

    def _B_setup():
        B, S, D, F = 1, 2048, 1024, 3584
        return {
            "x": _w((lambda *s: torch.randn(*s, dtype=torch.bfloat16) * 0.05)(B, S, D)),
            "w_gate": _w((lambda *s: torch.randn(*s, dtype=torch.bfloat16) * 0.05)(D, F)),
            "w_up": _w((lambda *s: torch.randn(*s, dtype=torch.bfloat16) * 0.05)(D, F)),
            "w_down": _w((lambda *s: torch.randn(*s, dtype=torch.bfloat16) * 0.05)(F, D)),
        }
    _B_in = _B_setup()

    return {
        "A_x": _A_in["x"],
        "A_wqkv": _A_in["wqkv"],
        "A_wo": _A_in["wo"],
        "B_x": _B_in["x"],
        "B_w_gate": _B_in["w_gate"],
        "B_w_up": _B_in["w_up"],
        "B_w_down": _B_in["w_down"],
    }

def reference(A_x, A_wqkv, A_wo, B_x, B_w_gate, B_w_up, B_w_down):
    def _A_ref(x, wqkv, wo):
        B, S, D = x.shape
        H = 32; Dh = D // H
        qkv = (lambda x, *d: x.permute(*d))((x @ wqkv).reshape(B, S, 3, H, Dh), 2, 0, 3, 1, 4)
        q, k, v = qkv[0], qkv[1], qkv[2]
        phi = lambda t: torch.where(t > 0, t + 1, torch.exp(t)) + 1e-6
        pq, pk = phi(q), phi(k)
        kv = torch.einsum("bhsd,bhse->bhde", pk, v)
        z = torch.einsum("bhsd->bhd", pk)
        num = torch.einsum("bhqd,bhde->bhqe", pq, kv)
        den = torch.einsum("bhqd,bhd->bhq", pq, z)[..., None] + 1e-6
        o = num / den
        return (lambda x, *d: x.permute(*d))(o, 0, 2, 1, 3).reshape(B, S, D) @ wo

    def _B_ref(x, w_gate, w_up, w_down):
        g = torch.einsum("bsd,df->bsf", x, w_gate)
        u = torch.einsum("bsd,df->bsf", x, w_up)
        h = _sigmoid(g) * u
        return torch.einsum("bsf,fd->bsd", h, w_down)

    x = A_x
    h = x + _A_ref(_layernorm(x, axis=-1), A_wqkv, A_wo)
    h2 = h + _B_ref(_layernorm(h, axis=-1), B_w_gate, B_w_up, B_w_down)
    return h2
```

```python
class Asm:
    def __init__(self):
        self.lines = []
    def __call__(self, s):
        for l in s.split("\n"):
            l = l.strip()
            if l:
                self.lines.append("    " + l if not l.endswith(":") else l)
    def label(self, name):
        self.lines.append(name + ":")
    def raw(self, s):
        self.lines.append(s)
    def extend(self, lst):
        for l in lst:
            self(l)
    def text(self):
        return "\n".join(self.lines) + "\n"

def vr(b, n=1, p="v"):
    return f"{p}{b}" if n == 1 else f"{p}[{b}:{b+n-1}]"
def ar(b, n=1):
    return vr(b, n, "a")
def sr(b, n=1):
    return vr(b, n, "s")

def kernel_header(name):
    return f""".text
.globl {name}
.p2align 8
.type {name},@function
{name}:
"""
def kernel_desc(name, vgpr, agpr=0, sgpr=102):
    acc = (vgpr + 3) // 4 * 4
    nfv = acc + agpr if agpr else vgpr
    return f""".section .rodata,"a"
.p2align 6
.amdhsa_kernel {name}
  .amdhsa_next_free_vgpr {nfv}
  .amdhsa_next_free_sgpr {sgpr}
  .amdhsa_accum_offset {acc}
  .amdhsa_group_segment_fixed_size 0
  .amdhsa_kernarg_size 80
  .amdhsa_user_sgpr_count 2
  .amdhsa_user_sgpr_kernarg_segment_ptr 1
  .amdhsa_system_sgpr_workgroup_id_x 1
  .amdhsa_float_denorm_mode_32 3
  .amdhsa_float_denorm_mode_16_64 3
.end_amdhsa_kernel
"""
```

```python
from asmlib import *

class Op:
    def __init__(self, text="", kind="other", tag=None, need=None):
        self.text = text; self.kind = kind; self.tag = tag; self.need = need; self.n = None

def classify(text):
    t = text.strip().split()[0] if text.strip() else ""
    if t.startswith("buffer_") or t.startswith("global_"): return "vm"
    if t.startswith("ds_"): return "lgkm"
    return "other"

class OpList(list):
    def __call__(self, s, tag=None, count=True):
        for l in s.split("\n"):
            l = l.strip()
            if l: self.append(Op(l, classify(l) if count else "other", tag))
    def label(self, name): self.append(Op(name + ":"))
    def raw(self, s): self.append(Op(s))
    def wait_vm(self, need): self.append(Op("", "wait_vm", need=need))
    def wait_lgkm(self, need): self.append(Op("", "wait_lgkm", need=need))

def emit_ops(a, ops):
    i = 0
    while i < len(ops):
        op = ops[i]
        if op.kind in ('wait_vm', 'wait_lgkm'):
            vmn = None; lgn = None
            while i < len(ops) and ops[i].kind in ('wait_vm', 'wait_lgkm'):
                o = ops[i]
                assert o.n is not None, o.need
                if o.kind == 'wait_vm': vmn = o.n if vmn is None else min(vmn, o.n)
                else: lgn = o.n if lgn is None else min(lgn, o.n)
                i += 1
            s = "s_waitcnt"
            if vmn is not None: s += f" vmcnt({min(vmn, 63)})"
            if lgn is not None: s += f" lgkmcnt({min(lgn, 15)})"
            a(s)
            continue
        a(op.text)
        i += 1

class Sim:
    def __init__(self): self.vm = []; self.lg = []
    def run(self, ops, sh=lambda t: t):
        for op in ops:
            if op.kind == 'vm': self.vm.append(sh(op.tag) if op.tag else None)
            elif op.kind == 'lgkm': self.lg.append(sh(op.tag) if op.tag else None)
            elif op.kind in ('wait_vm', 'wait_lgkm'):
                lst = self.vm if op.kind == 'wait_vm' else self.lg
                need = sh(op.need)
                cnt = need[2]
                idx = [i for i, t in enumerate(lst) if t and t[0] == need[0] and t[1] == need[1]]
                assert len(idx) == cnt, (need, len(idx))
                n = len(lst) - 1 - max(idx)
                op.n = n if op.n is None else min(op.n, n)

class Pipe:
    def __init__(self, **kw):
        self.accp = "v"; self.ap = "a"; self.wp = "a"
        self.no_mfma = False
        self.barrier = True
        self.dA = 0; self.dW = 0
        self.breaks = {}
        self.last_rd = True
        self.f0 = 0
        self.open_at = None
        self.need_at = {}
        self.__dict__.update(kw)
        self.MPF = self.RB * 2; self.MPS = self.F * self.MPF; self.NM = self.nst * self.MPS
        self.gaps = [[] for _ in range(self.NM)]; self.pre = [[] for _ in range(self.NM)]
        self.sal = [[] for _ in range(self.nst)]
        assert self.WR >= self.PD + 1 and (self.iters == 1 or (self.nst * self.F) % self.WR == 0)
    def rd(self, f):
        u, k = divmod(f, self.F)
        fr = self.frag(u % self.nst if self.iters > 1 else u, k)
        reg = self.aW + (f % self.WR) * 8
        return [Op(f"ds_read_b64_tr_b16 {vr(reg + 4 * s + 2 * j, 2, self.wp)}, v{fr['reg']} offset:{fr['off'](s, j)}", 'lgkm', ('R' + self.ph, f + self.f0)) for s in range(2) for j in range(2)]
    def mfma(self, u, k, rb, s):
        f = u * self.F + k
        fr = self.frag(u, k)
        w = vr(self.aW + (f % self.WR) * 8 + 4 * s, 4, self.wp)
        x = vr(self.aA + ((fr['aslot'] * self.RB + rb) * 2 + s) * 4, 4, self.ap)
        d = vr(fr['acc'](rb), 4, self.accp)
        p, q = (x, w) if fr['swap'] else (w, x)
        cin = "0" if fr.get('first') and s == (0 if rb % 2 == 0 else 1) else d
        return Op(f"v_mfma_f32_16x16x32_bf16 {d}, {p}, {q}, {cin}", 'mfma')
    def at(self, u, pos, ops):
        self.gaps[u * self.MPS + pos].extend(ops)
    def scalar(self, u, pos, grp):
        self.sal[u].append((u * self.MPS + pos, grp))
    def open_pos(self):
        return (self.F - self.PD) * self.MPF
    def layout_reads(self):
        for u in range(self.nst):
            for k in range(self.F):
                f = u * self.F + k; g = f * self.MPF
                self.pre[g].append(Op("", 'wait_lgkm', need=('R' + self.ph, f + self.f0, 4)))
                for need in self.need_at.get(f, []): self.pre[g].append(Op("", 'wait_vm', need=need))
                fn = f + self.PD
                if fn >= self.nst * self.F and not self.last_rd: continue
                if self.open_at is not None:
                    self.gaps[g].extend(self.open_at.get(fn, []))
                elif fn % self.F == 0:
                    self.gaps[g].extend(self.open_ops(fn // self.F))
                for j, r in enumerate(self.rd(fn)):
                    self.gaps[g + self.rd_pos(j)].append(r)
            for need in self.a_need(u):
                self.pre[u * self.MPS].append(Op("", 'wait_vm', need=need))
    def body(self):
        for u in range(self.nst):
            last = -1
            for g0, grp in sorted(self.sal[u], key=lambda x: x[0]):
                lo = max(g0, last); hi = (u + 1) * self.MPS - 1
                cand = range(lo, min(hi, lo + self.sal_win) + 1)
                best = min(cand, key=lambda g: (len(self.gaps[g]) + (len(self.pre[g + 1]) if g + 1 < self.NM else 0), g))
                self.gaps[best].extend(grp); last = best
        out = []
        for u in range(self.nst):
            for k in range(self.F):
                for rb in range(self.RB):
                    for si, s in enumerate((0, 1) if rb % 2 == 0 else (1, 0)):
                        g = (u * self.F + k) * self.MPF + rb * 2 + si
                        out.extend(self.pre[g])
                        if not self.no_mfma: out.append(self.mfma(u, k, rb, s))
                        out.extend(self.gaps[g])
            if u in self.breaks: out.extend(self.breaks[u])
        return out
    def first_reads(self):
        ops = list(self.open_ops(0))
        for f in range(self.PD): ops.extend(self.rd(f))
        return ops
    def shift(self, it):
        def sh(t):
            d = {'A' + self.ph: self.dA, 'W' + self.ph: self.dW, 'R' + self.ph: self.nst * self.F, 'I' + self.ph: 1}.get(t[0], 0) * it
            return (t[0], t[1] + d) + tuple(t[2:])
        return sh

def cost(op):
    t = op.text.split()[0] if op.text else "s_waitcnt"
    if t.endswith(":"): return 0, False
    if t.startswith(("v_exp", "v_rcp", "v_rsq", "v_sqrt", "v_log")): return 8, True
    if t.startswith("v_"): return 4, True
    return 4, False

def gap_room(p, g):
    ops = p.gaps[g] + (p.pre[g + 1][:1] if g + 1 < p.NM else [])
    return 8 - sum(cost(o)[0] for o in ops)

def fill_valu(p, ops, g0, g1, force=True):
    room = {g: gap_room(p, g) for g in range(g0, g1)}
    need = sum(cost(o)[0] for o in ops)
    free = sum(max(0, r) for r in room.values())
    extra = max(0, need - free)
    good = [g for g in range(g0, g1) if room[g] >= 8] or list(range(g0, g1))
    for i, g in enumerate(good):
        room[g] += ((i + 1) * extra // 4 // len(good) - i * extra // 4 // len(good)) * 4
    g = g0; i = 0
    while i < len(ops):
        c = cost(ops[i])[0]
        if g >= g1 - 1 or room[g] >= c:
            gg = min(g, g1 - 1)
            p.gaps[gg].append(ops[i]); room[gg] -= c; i += 1
        else:
            g += 1
    return min(g, g1 - 1)
```

```python
import struct, os
from asmlib import *
from pipe import *

NAME = "sequential_preLN__linear_attn_block__glu_gated_glu__prompt_kernel"
WS_LN1 = 0
WS_O   = 4 << 20
WS_H   = 8 << 20
WS_HH  = 12 << 20
WS_KV  = 28 << 20
KVS = 4096 + 512
WS_MU  = 31 << 20
WS_MX  = WS_MU + (128 << 10)
WS_SQ  = WS_MU + (256 << 10)
WS_FL  = 32 << 20
WS_EP  = WS_FL + (1 << 20) - 256
WS_STAMP = 34 << 20
WS_SIZE = 36 << 20
LDS_TOTAL = 163840
SCR = 147456

def f2u(x): return struct.unpack("<I", struct.pack("<f", x))[0]
def lg(x): return x.bit_length() - 1

sWave = 3
sA, sW, sX, sK = 4, 8, 12, 16
sAoff, sWoff, sM0, sM0end, sRd, sCnt, sTmp = 20, 21, 22, 23, 24, 25, 26
sMt1, sHp, sMt2, sNt2, sMt3, sNt3, sNonce = 27, 28, 29, 30, 31, 32, 33
sC0 = 34
sId1, sId2, sKV, sRb2, sU4, sU2, sPfA, sPfB, sSt, sM4 = range(40, 50)
t0 = 50
pX, pQKV, pWO, pG, pU, pD, pOUT, pWS = 64, 66, 68, 72, 74, 76, 78, 82
vL16, vLane = 254, 255
STREGS = list(range(84, 102)) + [38, 39, 62, 63, 70, 71, 80, 81]
S = lambda d: f"s[{d}:{d+3}]"

DEFAULTS = dict(stamps=None, mper1=8, mper2=4, mper3=4, xnt=" nt",
                actA=['code', 'c0'], actB=[], actC=['c1', 'wo', 'cq'], actD=[('w', 0, 9)],
                P1=3, send1=18, poll1=22, P2=6, w3loop=2, P3=2, G0=6, P4=5, PW4=16,
                pf_kv=[('gu', 0, 5)], pf_s2=[], pf_s3=[], pf_loop=[('gu', 5, 4), ('dn', 0, 6)], pf_tail=[('dn', 18, 38)],
                epi_pk=False)

class G:
    def __init__(self, **kw):
        self.o = OpList(); self.sim = Sim(); self.out = Asm(); self.nst = 0; self.names = []
        self.opt = dict(DEFAULTS); self.opt.update(kw)
    def flush(self):
        self.sim.run(self.o); emit_ops(self.out, self.o); del self.o[:]
    def loop(self, p, name, body):
        self.flush()
        for it in range(p.iters): self.sim.run(body, p.shift(it))
        a = self.out
        if p.iters > 1:
            a(f"s_mov_b32 s{sCnt}, {p.iters}")
            a.raw(".p2align 3")
            a.label(f"L_{name}")
        emit_ops(a, body)
        if p.iters > 1:
            a(f"s_sub_u32 s{sCnt}, s{sCnt}, 1")
            a(f"s_cmp_lg_u32 s{sCnt}, 0")
            a(f"s_cbranch_scc1 L_{name}")
    def stamp(self, name, o=None):
        if not self.opt['stamps']: return
        o = self.o if o is None else o
        assert self.nst < len(STREGS)
        o("s_memrealtime s[60:61]" if self.opt['stamps'] == 'rt' else "s_memtime s[60:61]")
        o("s_waitcnt lgkmcnt(0)")
        o(f"s_mov_b32 s{STREGS[self.nst]}, s60")
        self.nst += 1; self.names.append(name)

def srd(o, d, base, size):
    o(f"s_mov_b32 s{d}, s{base}")
    o(f"s_mov_b32 s{d+1}, s{base+1}")
    o(f"s_mov_b32 s{d+2}, {size}")
    o(f"s_mov_b32 s{d+3}, 0x20000")

def srd_gu(o, d):
    o(f"s_cmp_ge_u32 s{sWave}, 2")
    o(f"s_cselect_b32 s{d}, s{pU}, s{pG}")
    o(f"s_cselect_b32 s{d+1}, s{pU+1}, s{pG+1}")
    o(f"s_mov_b32 s{d+2}, {1024*7168}")
    o(f"s_mov_b32 s{d+3}, 0x20000")

def tilemap(o, MT, mper, dM, dN):
    nper = 32 // mper; xm = MT // mper
    o(f"s_and_b32 s{t0}, s2, 7")
    o(f"s_lshr_b32 s{t0+1}, s2, 3")
    o(f"s_and_b32 s{t0+2}, s{t0}, {xm-1}")
    o(f"s_lshr_b32 s{t0+3}, s{t0}, {lg(xm)}")
    o(f"s_lshl_b32 s{t0+2}, s{t0+2}, {lg(mper)}")
    o(f"s_and_b32 s{t0+4}, s{t0+1}, {mper-1}")
    o(f"s_add_u32 s{dM}, s{t0+2}, s{t0+4}")
    o(f"s_lshl_b32 s{t0+3}, s{t0+3}, {lg(nper)}")
    o(f"s_lshr_b32 s{t0+4}, s{t0+1}, {lg(mper)}")
    o(f"s_add_u32 s{dN}, s{t0+3}, s{t0+4}")

def swap_add(o, regs, tmps, which):
    for v, t in zip(regs, tmps): o(f"v_mov_b32 v{t}, v{v}")
    o("s_nop 1")
    for v, t in zip(regs, tmps): o(f"v_permlane{which}_swap_b32 v{v}, v{t}")
    o("s_nop 0")
    for v, t in zip(regs, tmps): o(f"v_add_f32 v{v}, v{v}, v{t}")

def ror_add(o, regs, r):
    if len(regs) < 3: o("s_nop 1")
    for v in regs: o(f"v_add_f32_dpp v{v}, v{v}, v{v} row_ror:{r} row_mask:0xf bank_mask:0xf")

def set_exec(o, n):
    if n >= 64: return
    if n == 32: o("s_mov_b32 exec_hi, 0")
    elif n < 32: o(f"s_mov_b64 exec, {hex((1 << n) - 1)}")
    else: o(f"s_mov_b32 exec_hi, {hex((1 << (n - 32)) - 1)}")

def send_flags(o, idx, n, sBase, mul, sSlot, vt):
    o(f"s_cmp_lg_u32 s{sWave}, 0")
    o(f"s_cbranch_scc1 L_nosend{idx}")
    o(f"s_lshl_b32 s58, s{sBase}, 8")
    o(f"s_lshl_b32 s59, s{sSlot}, 2")
    o("s_add_u32 s58, s58, s59")
    o(f"s_add_u32 s58, s58, {WS_FL + idx * 65536}")
    o(f"v_lshlrev_b32 v{vt}, {8 + lg(mul)}, v{vLane}")
    o(f"v_mov_b32 v{vt+1}, s{sNonce}")
    set_exec(o, n)
    o(f"buffer_store_dword v{vt+1}, v{vt}, {S(sK)}, s58 offen sc1", count=False)
    o("s_mov_b64 exec, -1")
    o.label(f"L_nosend{idx}")

def poll_flags(o, idx, n, sId, vt):
    o(f"s_lshl_b32 s58, s{sId}, 8")
    o(f"s_add_u32 s58, s58, {WS_FL + idx * 65536}")
    o(f"v_and_b32 v{vt}, {n-1}, v{vLane}")
    o(f"v_lshlrev_b32 v{vt}, 2, v{vt}")
    o("s_mov_b32 s59, 0x20000")
    o.label(f"L_poll{idx}")
    o(f"buffer_load_dword v{vt+1}, v{vt}, {S(sK)}, s58 offen sc1", count=False)
    o("s_sub_u32 s59, s59, 1")
    o(f"s_cbranch_scc1 L_polldone{idx}")
    o("s_waitcnt vmcnt(0)")
    o(f"v_cmp_ne_u32 vcc, s{sNonce}, v{vt+1}")
    o("s_cmp_lg_u64 vcc, 0")
    o(f"s_cbranch_scc1 L_poll{idx}")
    o.label(f"L_polldone{idx}")

def rd128_lane(o, vR, vt):
    o(f"v_lshrrev_b32 v{vt}, 2, v{vLane}")
    o(f"v_lshlrev_b32 v{vt}, 7, v{vt}")
    o(f"v_and_b32 v{vt+1}, 3, v{vLane}")
    o(f"v_lshl_add_u32 v{vt}, v{vt+1}, 3, v{vt}")
    o(f"v_bfe_u32 v{vt+1}, v{vLane}, 3, 2")
    for b in range(4):
        o(f"v_xor_b32 v{vt+2}, {b}, v{vt+1}")
        o(f"v_lshl_add_u32 v{vR+b}, v{vt+2}, 5, v{vt}")

def dma128_lane(o, vD, vt):
    o(f"v_lshrrev_b32 v{vt}, 3, v{vLane}")
    o(f"v_and_b32 v{vt+1}, 6, v{vt}")
    o(f"v_and_b32 v{vt+2}, 7, v{vLane}")
    o(f"v_xor_b32 v{vt+1}, v{vt+1}, v{vt+2}")
    o(f"v_lshlrev_b32 v{vt}, 11, v{vt}")
    o(f"v_lshl_add_u32 v{vt+1}, v{vt+1}, 4, v{vt}")
    o(f"s_lshl_b32 s{t0}, s{sWave}, 15")
    o(f"s_lshl_b32 s{t0+1}, s{sNt2}, 7")
    o(f"s_add_u32 s{t0}, s{t0}, s{t0+1}")
    o(f"v_add_u32 v{vD}, s{t0}, v{vt+1}")
    o(f"v_add_u32 v{vD+1}, {8*2048-1024}, v{vD}")

def rowtile_lane(o, vX, vXr, vt, XL, sL):
    o(f"v_lshrrev_b32 v{vt}, 3, v{vLane}")
    o(f"v_lshrrev_b32 v{vt+1}, 4, v{vLane}")
    o(f"v_and_b32 v{vt+2}, 7, v{vLane}")
    o(f"v_xor_b32 v{vt+1}, v{vt+1}, v{vt+2}")
    o(f"v_xor_b32 v{vt+2}, 4, v{vt+1}")
    o(f"v_lshlrev_b32 v{vt}, 11, v{vt}")
    o(f"s_lshl_b32 s{t0}, s{sRb2}, 15")
    o(f"s_lshl_b32 s{t0+1}, s{sNt2}, 7")
    o(f"s_add_u32 s{t0}, s{t0}, s{t0+1}")
    o(f"v_add_u32 v{vt}, s{t0}, v{vt}")
    o(f"v_lshl_add_u32 v{vX}, v{vt+1}, 4, v{vt}")
    o(f"v_lshl_add_u32 v{vX+1}, v{vt+2}, 4, v{vt}")
    o(f"v_and_b32 v{vt}, 15, v{vLane}")
    o(f"v_lshrrev_b32 v{vt+1}, 1, v{vt}")
    o(f"v_lshrrev_b32 v{vt+2}, 5, v{vLane}")
    o(f"v_xor_b32 v{vt+1}, v{vt+1}, v{vt+2}")
    o(f"v_lshlrev_b32 v{vt}, 7, v{vt}")
    o(f"v_bfe_u32 v{vt+2}, v{vLane}, 4, 1")
    o(f"v_lshl_add_u32 v{vt}, v{vt+2}, 3, v{vt}")
    o(f"s_lshl_b32 s{sL}, s{sWave}, 12")
    if XL: o(f"s_add_u32 s{sL}, s{sL}, {XL}")
    o(f"v_add_u32 v{vt}, s{sL}, v{vt}")
    for nb in range(4):
        o(f"v_xor_b32 v{vt+2}, {2*nb}, v{vt+1}")
        o(f"v_lshl_add_u32 v{vXr+nb}, v{vt+2}, 4, v{vt}")

def phi_ops(o, regs, T):
    for i, r in enumerate(regs): o(f"v_pk_mul_f32 {vr(T+2*i,2)}, {vr(r,2)}, s[{sC0}:{sC0+1}]")
    for i, r in enumerate(regs):
        o(f"v_exp_f32_e64 v{T+2*i}, v{T+2*i} clamp")
        o(f"v_exp_f32_e64 v{T+2*i+1}, v{T+2*i+1} clamp")
        o(f"v_pk_add_f32 {vr(r,2)}, {vr(r,2)}, 1.0 op_sel_hi:[1,0]")
    for i, r in enumerate(regs):
        o(f"v_max_f32 v{r}, v{r}, v{T+2*i}")
        o(f"v_max_f32 v{r+1}, v{r+1}, v{T+2*i+1}")
    for i, r in enumerate(regs): o(f"v_pk_add_f32 {vr(r,2)}, {vr(r,2)}, s[{sC0+2}:{sC0+3}]")

vL128 = 241
def pf_off(o, kind, st0, n, sd):
    if kind == 'gu':
        o(f"s_mul_i32 s{sd}, s{sU2}, {7*n*128}")
        if st0: o(f"s_add_u32 s{sd}, s{sd}, {st0*64*7168}")
        return 7 * n
    o(f"s_mul_i32 s{sd}, s{sU4}, {n*128}")
    if st0: o(f"s_add_u32 s{sd}, s{sd}, {st0*131072}")
    return n
def pf_load(o, nl, sd, sS, dest):
    set_exec(o, nl)
    o(f"buffer_load_dword {dest}, v{vL128}, {S(sS)}, s{sd} offen")
    if nl < 64: o("s_mov_b64 exec, -1")
def pf_now(o, lst, dest):
    for kind, st0, n in lst:
        if kind == 'gu': srd_gu(o, 52)
        else: srd(o, 52, pD, 3584 * 2048)
        nl = pf_off(o, kind, st0, n, 56)
        pf_load(o, nl, 56, 52, dest)

def interleave(o, main, side, every):
    side = list(side)
    for i, op in enumerate(main):
        o.append(op)
        if side and (i + 1) % every == 0: o.extend(side.pop(0))
    for grp in side: o.extend(grp)

def gen(**kw):
    g = G(**kw); opt = g.opt; o = g.o
    o("s_cmp_ge_u32 s2, 256")
    o("s_cbranch_scc1 L_end")
    o("s_load_dwordx16 s[64:79], s[0:1], 0")
    o("s_load_dwordx4 s[80:83], s[0:1], 64")
    g.stamp("start")
    o("v_lshrrev_b32 v1, 6, v0")
    o(f"v_and_b32 v{vLane}, 63, v0")
    o(f"v_readfirstlane_b32 s{sWave}, v1")
    o(f"v_lshlrev_b32 v{vL16}, 4, v{vLane}")
    tilemap(o, 16, opt['mper1'], sMt1, sHp)
    T = 144
    o(f"v_lshrrev_b32 v{T}, 3, v{vLane}")
    o(f"v_and_b32 v{T+1}, 6, v{T}")
    o(f"v_and_b32 v{T+2}, 7, v{vLane}")
    o(f"v_xor_b32 v{T+3}, v{T+1}, v{T+2}")
    o(f"v_lshlrev_b32 v{T+4}, 11, v{T}")
    o(f"v_lshl_add_u32 v{T+4}, v{T+3}, 4, v{T+4}")
    o(f"s_lshl_b32 s{sId1}, s{sMt1}, 4")
    o(f"s_add_u32 s{sId1}, s{sId1}, s{sHp}")
    o(f"s_lshl_b32 s{t0+1}, s{sId1}, 14")
    o(f"s_lshl_b32 s{t0+2}, s{sWave}, 9")
    o(f"s_add_u32 s{t0+1}, s{t0+1}, s{t0+2}")
    o(f"s_lshl_b32 s{sM0}, s{sWave}, 12")
    o(f"s_lshl_b32 s{sU4}, s2, 2")
    o(f"s_add_u32 s{sU4}, s{sU4}, s{sWave}")
    o(f"v_lshlrev_b32 v{vL128}, 7, v{vLane}")
    o("s_waitcnt lgkmcnt(0)")
    srd(o, sX, pX, 4 << 20)
    for i in range(4):
        o(f"s_add_u32 m0, s{sM0}, {SCR + 896*i}")
        o("s_nop 0")
        o(f"buffer_load_dwordx4 v{T+4}, {S(sX)}, s{t0+1} offen offset:{128*i}{opt['xnt']} lds", tag=('x', 0))
    o(f"s_add_u32 s{t0+6}, s{pWS}, {WS_EP}")
    o(f"s_addc_u32 s{t0+7}, s{pWS+1}, 0")
    o(f"s_load_dword s{sNonce}, s[{t0+6}:{t0+7}], 0")
    srd(o, sW, pQKV, 1024 * 6144)
    srd(o, sA, pWO, 2 << 20)
    srd(o, sK, pWS, WS_SIZE)
    o(f"s_and_b32 s{t0}, s{sWave}, 1")
    o(f"s_lshl_b32 s{sU2}, s2, 1")
    o(f"s_add_u32 s{sU2}, s{sU2}, s{t0}")
    WB = 160
    vA1 = [224, 225]; vD1 = 226; vR1 = 228; vRl1 = 232; vT = 242; vD2 = 220
    NS1 = 9
    def w1_ops(t):
        r = []
        for sg in range(2):
            for hf in range(2):
                pre = []
                if hf == 0 and (sg == 0 or t >= 16):
                    if t < 16: so = t * 393216 + 2048
                    elif t < 24: so = (t - 16) * 786432 + sg * (393216 - 2048)
                    else: so = (t - 24) * 262144 + sg * (131072 - 2048)
                    pre.append(Op(f"s_mov_b32 s{sWoff}, {so}"))
                if sg == 0 and hf == 0: pre.insert(0, Op(f"s_add_u32 m0, s{sM0}, {(t % NS1) * 16384}"))
                v, sd = (vD1, sW) if t < 24 else (vD2, sA)
                r.append(pre + [Op(f"buffer_load_dwordx4 v{v+hf}, {S(sd)}, s{sWoff} offen offset:{sg*2048+hf*1024} lds", 'vm', ('W1', t))])
        return r
    def act(o, lst):
        for x in lst:
            if x == 'code':
                o("s_getpc_b64 s[52:53]")
                o.label("L_pc")
                o(f"s_sub_u32 s52, s52, L_pc-{NAME}")
                o("s_subb_u32 s53, s53, 0")
                o(f"s_mov_b32 s54, L_end-{NAME}")
                o("s_mov_b32 s55, 0x20000")
                o("s_lshr_b32 s56, s2, 3")
                o("s_lshl_b32 s56, s56, 2")
                o(f"s_add_u32 s56, s56, s{sWave}")
                o("s_lshl_b32 s56, s56, 9")
                pf_load(o, 4, 56, 52, f"v{T+6}")
            elif x in ('c0', 'c1'):
                o(f"s_lshr_b32 s56, s{sU4}, 1")
                o("s_mul_i32 s56, s56, 6144")
                o(f"s_and_b32 s57, s{sWave}, 1")
                o("s_lshl_b32 s57, s57, 11")
                o("s_add_u32 s56, s56, s57")
                o(f"s_add_u32 s56, s56, {2048 + (512 * 6144 if x == 'c1' else 0)}")
                pf_load(o, 16, 56, sW, f"v{T+6}")
            elif x == 'cq':
                o(f"s_mul_i32 s56, s{sU4}, 6144")
                pf_load(o, 16, 56, sW, f"v{T+6}")
            elif x == 'wo':
                o(f"s_lshl_b32 s56, s{sHp}, 6")
                o(f"s_lshl_b32 s57, s{sMt1}, 2")
                o("s_add_u32 s56, s56, s57")
                o(f"s_add_u32 s56, s56, s{sWave}")
                o("s_lshl_b32 s56, s56, 11")
                o(f"buffer_load_dwordx4 {vr(WB,4)}, v{vL16}, {S(sA)}, s56 offen", tag=('wo', 0))
                o(f"buffer_load_dwordx4 {vr(WB+4,4)}, v{vL16}, {S(sA)}, s56 offen offset:1024", tag=('wo', 0))
            elif x[0] == 'w':
                for t in range(x[1], x[2]):
                    for grp in w1_ops(t): o.extend(grp)
            else: pf_now(o, [x], f"v{T+6}")
    isw = lambda x: x[0] == 'w' and x != 'wo'
    act(o, [x for x in opt['actA'] if not isw(x)])
    o(f"s_lshl_b32 s{t0}, s{sMt1}, 3")
    o(f"s_lshl_b32 s{t0+1}, s{sWave}, 1")
    o(f"s_add_u32 s{t0}, s{t0}, s{t0+1}")
    o(f"s_lshl_b32 s{t0}, s{t0}, 15")
    o(f"v_add_u32 v{vA1[0]}, s{t0}, v{vL16}")
    o(f"v_add_u32 v{vA1[1]}, 0x8000, v{vA1[0]}")
    o(f"v_lshrrev_b32 v{vT}, 5, v{vLane}")
    o(f"v_bfe_u32 v{vT+1}, v{vLane}, 3, 2")
    o(f"v_lshl_add_u32 v{vT}, v{vT}, 3, v{vT+1}")
    o(f"v_mul_u32_u24 v{vT}, 6144, v{vT}")
    o(f"v_lshl_add_u32 v{vT}, v{T+3}, 4, v{vT}")
    o(f"s_lshr_b32 s{t0}, s{sWave}, 1")
    o(f"s_lshl_b32 s{t0}, s{t0}, 5")
    o(f"s_and_b32 s{t0+1}, s{sWave}, 1")
    o(f"s_lshl_b32 s{t0+1}, s{t0+1}, 2")
    o(f"s_add_u32 s{t0}, s{t0}, s{t0+1}")
    o(f"s_mul_i32 s{t0}, s{t0}, 6144")
    o(f"s_lshl_b32 s{t0+1}, s{sHp}, 7")
    o(f"s_add_u32 s{t0}, s{t0}, s{t0+1}")
    o(f"v_add_u32 v{vD1}, s{t0}, v{vT}")
    o(f"v_add_u32 v{vD1+1}, {16*6144-1024}, v{vD1}")
    act(o, [x for x in opt['actA'] if isw(x)])
    rd128_lane(o, vRl1, vT)
    tilemap(o, 16, opt['mper2'], sMt2, sNt2)
    tilemap(o, 8, opt['mper3'], sMt3, sNt3)
    o(f"s_lshl_b32 s{sId2}, s{sMt2}, 4")
    o(f"s_add_u32 s{sId2}, s{sId2}, s{sNt2}")
    o(f"s_lshl_b32 s{sRb2}, s{sMt2}, 3")
    o(f"s_lshl_b32 s{t0}, s{sWave}, 1")
    o(f"s_add_u32 s{sRb2}, s{sRb2}, s{t0}")
    dma128_lane(o, vD2, vT)
    o(f"s_lshl_b32 s{sKV}, s{sHp}, 4")
    o(f"s_add_u32 s{sKV}, s{sKV}, s{sMt1}")
    o(f"s_mul_i32 s{sKV}, s{sKV}, {KVS}")
    o(f"s_add_u32 s{sKV}, s{sKV}, {WS_KV}")
    o(f"s_mov_b32 s{sC0}, 0x3fb8aa3b"); o(f"s_mov_b32 s{sC0+1}, 0x3fb8aa3b")
    o(f"s_mov_b32 s{sC0+2}, {hex(f2u(1e-6))}"); o(f"s_mov_b32 s{sC0+3}, {hex(f2u(1e-6))}")
    vXw, vXp, vXv, vKs, vZs, vWs = 244, 245, 246, 247, 248, 249
    XV = (15 % NS1) * 16384
    o(f"v_add_u32 v{vXw}, s{sM0}, v{vL16}")
    o(f"s_lshr_b32 s{t0}, s{sWave}, 1")
    o(f"s_lshl_b32 s{t0+1}, s{t0}, 11")
    o(f"s_add_u32 s{t0+1}, s{t0+1}, {SCR}")
    o(f"v_add_u32 v{vXp}, s{t0+1}, v{vL16}")
    o(f"s_lshl_b32 s{t0+1}, s{sWave}, 10")
    o(f"v_add_u32 v{vKs}, s{t0+1}, v{vL16}")
    o(f"v_add_u32 v{vXv}, {XV}, v{vKs}")
    o(f"v_lshrrev_b32 v{vZs}, 4, v{vLane}")
    o(f"s_lshl_b32 s{t0}, s{t0}, 7")
    o(f"s_add_u32 s{t0}, s{t0}, 4096")
    o(f"v_lshl_add_u32 v{vZs}, v{vZs}, 5, s{t0}")
    o(f"s_lshl_b32 s{t0+1}, s{sWave}, 2")
    o(f"s_add_u32 s{t0+1}, s{t0+1}, 4352")
    o(f"v_mov_b32 v{vWs}, s{t0+1}")
    o(f"v_and_b32 v{T+1}, 6, v{T+2}")
    o(f"v_xor_b32 v{T+1}, v{T+1}, v{T}")
    o(f"v_lshlrev_b32 v{T+1}, 4, v{T+1}")
    o(f"v_lshl_add_u32 v{T+1}, v{T+2}, 7, v{T+1}")
    o(f"s_add_u32 s{t0+1}, s{sM0}, {SCR}")
    o(f"v_add_u32 v{T+1}, s{t0+1}, v{T+1}")
    o(f"v_lshlrev_b32 v{T+4}, 8, v{T}")
    o(f"v_lshl_add_u32 v{T+4}, v{T+2}, 4, v{T+4}")
    o(f"v_lshl_add_u32 v{T+5}, v{T+2}, 3, s{t0+1}")
    o(f"v_lshlrev_b32 v{T+10}, 3, v{T+2}")
    o(f"v_add_u32 v{T+10}, {SCR}, v{T+10}")
    o(f"v_lshlrev_b32 v{T+11}, 2, v{T+2}")
    o(f"s_lshr_b32 s{sPfA}, s{sId1}, 1")
    o(f"s_lshl_b32 s{sPfA}, s{sPfA}, 15")
    o(f"s_lshl_b32 s{t0}, s{sWave}, 13")
    o(f"s_add_u32 s{sPfA}, s{sPfA}, s{t0}")
    o(f"s_and_b32 s{t0}, s{sHp}, 1")
    o(f"s_lshl_b32 s{t0}, s{t0}, 7")
    o(f"s_add_u32 s{sPfA}, s{sPfA}, s{t0}")
    o(f"s_add_u32 s{sPfB}, s{sPfA}, 4096")
    o(f"s_lshl_b32 s{sSt}, s{sId1}, 5")
    o(f"s_add_u32 s{sSt}, s{sSt}, {WS_MX}")
    o(f"s_lshl_b32 s{sM4}, s{sWave}, 1")
    o(f"s_lshl_b32 s{sM4}, 3, s{sM4}")
    o.wait_vm(('x', 0, 4))
    for i in range(4): o(f"ds_read_b128 {vr(4*i,4)}, v{T+1} offset:{i*1024}")
    g.stamp("x")
    act(o, opt['actB'])
    o("s_waitcnt lgkmcnt(0)")
    o(f"s_add_u32 s{sNonce}, s{sNonce}, 0x9e3779b9")
    F = 16
    for i in range(16):
        o(f"v_lshlrev_b32 v{F+2*i}, 16, v{i}")
        o(f"v_and_b32 v{F+2*i+1}, 0xffff0000, v{i}")
    o(f"v_pk_add_f32 v[48:49], {vr(F,2)}, {vr(F+2,2)}")
    o(f"v_pk_mul_f32 v[50:51], {vr(F,2)}, {vr(F,2)}")
    o(f"v_pk_fma_f32 v[50:51], {vr(F+2,2)}, {vr(F+2,2)}, v[50:51]")
    for i in range(2, 16):
        o(f"v_pk_add_f32 v[48:49], v[48:49], {vr(F+2*i,2)}")
        o(f"v_pk_fma_f32 v[50:51], {vr(F+2*i,2)}, {vr(F+2*i,2)}, v[50:51]")
    o("v_add_f32 v48, v48, v49")
    o("v_add_f32 v49, v50, v51")
    ror_add(o, [48, 49], 8)
    swap_add(o, [48, 49], [50, 51], 16)
    swap_add(o, [48, 49], [50, 51], 32)
    o(f"ds_write_b64 v{T+5}, v[48:49]")
    o("s_waitcnt lgkmcnt(0)")
    o("s_barrier")
    for w in range(4): o(f"ds_read_b64 {vr(52+2*w,2)}, v{T+10} offset:{w*4096}")
    o("s_waitcnt lgkmcnt(0)")
    o("v_pk_add_f32 v[52:53], v[52:53], v[54:55]")
    o("v_pk_add_f32 v[56:57], v[56:57], v[58:59]")
    o("v_pk_add_f32 v[52:53], v[52:53], v[56:57]")
    o(f"v_mul_f32 v52, {hex(f2u(1/1024))}, v52")
    o(f"v_mul_f32 v53, {hex(f2u(1/1024))}, v53")
    o("v_fma_f32 v53, -v52, v52, v53")
    o("v_max_f32 v53, 0, v53")
    o(f"v_add_f32 v53, {hex(f2u(1e-5))}, v53")
    o("v_rsq_f32 v54, v53")
    o("s_nop 0")
    o("v_mul_f32 v56, -v52, v54")
    for i in range(16):
        o(f"v_pk_fma_f32 {vr(F+2*i,2)}, {vr(F+2*i,2)}, v[54:55], v[56:57] op_sel_hi:[1,0,0]")
        o(f"v_cvt_pk_bf16_f32 v{i}, v{F+2*i}, v{F+2*i+1}")
        if i % 4 == 3:
            j = i // 4
            o(f"buffer_store_dwordx4 {vr(4*j,4)}, v{T+4}, {S(sK)}, s{sPfA+(j>>1)} offen offset:{(j&1)*2048} sc1", tag=('st0', 0))
    o(f"s_mov_b32 exec_lo, s{sM4}")
    o("s_mov_b32 exec_hi, 0")
    o(f"buffer_store_dword v52, v{T+11}, {S(sK)}, s{sSt} offen sc1", tag=('st0', 0))
    o("s_mov_b64 exec, -1")
    g.stamp("lnst")
    act(o, opt['actC'])
    o(f"s_lshl_b32 s{t0}, s{sMt1}, 4")
    o.wait_vm(('st0', 0, 5))
    o("s_barrier")
    send_flags(o, 0, 16, t0, 1, sHp, vT)
    g.stamp("sent0")
    act(o, opt['actD'])
    o.wait_vm(('wo', 0, 2))
    for i in range(8):
        o(f"v_lshlrev_b32 v{F+2*i}, 16, v{WB+i}")
        o(f"v_and_b32 v{F+2*i+1}, 0xffff0000, v{WB+i}")
    for i in range(1, 8): o(f"v_pk_add_f32 {vr(F,2)}, {vr(F,2)}, {vr(F+2*i,2)}")
    o(f"v_add_f32 v{F}, v{F}, v{F+1}")
    for r in (8, 4, 2, 1): ror_add(o, [F], r)
    swap_add(o, [F], [F + 1], 16)
    swap_add(o, [F], [F + 1], 32)
    o(f"v_mul_f32 v223, {hex(f2u(1/1024))}, v{F}")
    poll_flags(o, 0, 16, sId1, vT)
    g.stamp("sync0")
    acc1 = lambda rb, blk: (rb * 12 + blk) * 4
    def frag1(u, k):
        base = (u % NS1) * 16384
        if u < 16: blk, asl, sw, first = k, u, True, u == 0
        else: blk, asl, sw, first = 8 + (k & 3), 2 * (u - 16) + (k >> 2), False, (u == 16 and k < 4)
        return dict(acc=lambda rb: acc1(rb, blk), aslot=asl, swap=sw, first=first, reg=vR1 + (k & 3),
                    off=lambda s, j: (base & 0xffff) + (2 * s + j) * 4096 + (k >> 2) * 2048)
    def open1(u):
        ops = [Op("", 'wait_vm', need=('W1', u, 4)), Op("s_barrier")]
        base = (u % NS1) * 16384
        if u == 0 or (base >> 16) != (((u - 1) % NS1) * 16384 >> 16):
            ops += [Op(f"v_add_u32 v{vR1+b}, {base & ~0xffff}, v{vRl1+b}") for b in range(4)]
        return ops
    def a_load(ph, vA, RB, slot, u, i, sd=sK):
        rb, s = divmod(i, 2)
        return Op(f"buffer_load_dwordx4 {ar(((slot*RB+rb)*2+s)*4,4)}, v{vA[rb]}, {S(sd)}, s{sAoff} offen offset:{((u%2)*2+s)*1024} sc1", 'vm', ('A' + ph, u))
    p = Pipe(ph='1', RB=2, F=8, nst=24, iters=1, PD=4, WR=6, aA=0, aW=96, wp='v', sal_win=0, last_rd=False,
             frag=frag1, open_ops=open1, rd_pos=lambda j: j, a_need=lambda u: [('A1', u, 4)] if u < 16 else [])
    p.layout_reads()
    P1 = opt['P1']
    for u in range(P1):
        if u % 2 == 0: o(f"s_mov_b32 s{sAoff}, {u*2048}")
        for i in range(4): o.append(a_load('1', vA1, 2, u, u, i))
    npre = max([x[2] for k in 'ABCD' for x in opt['act' + k] if isw(x)])
    up = opt['poll1']
    def wsched(t):
        if t < 16: return max(t - 7, min(t - 2, 2 + ((t - npre) * 11) // (16 - npre)))
        if t < 20: return {16: 13, 17: 14, 18: 14, 19: 15}[t]
        if t < 24: return 'brk'
        u = max(17, t - 7)
        return u if u < up else 'late'
    per = {}
    for t in range(npre, 32):
        for grp in w1_ops(t): per.setdefault(wsched(t), []).append(grp)
    GB = 144
    gl = [[Op(f"s_lshl_b32 s{t0}, s{sHp}, 4"), Op(f"s_mul_i32 s{t0}, s{t0}, {KVS}"), Op(f"s_add_u32 s{t0}, s{t0}, {WS_KV}"), Op(f"s_mov_b32 s{t0+1}, s{t0}")]]
    for m in range(16):
        gl.append([Op(f"buffer_load_dwordx4 {vr(GB+4*m,4)}, v{vKs}, {S(sK)}, s{t0+1} offen sc1", 'vm', ('g', m)), Op(f"s_add_u32 s{t0+1}, s{t0+1}, {KVS}")])
    gl.append([Op(f"buffer_load_dwordx4 v[0:3], v{vXp}, {S(sK)}, s{t0} offen sc1", 'vm', ('gz', 0))])
    gl.append([Op(f"buffer_load_dwordx4 v[4:7], v{vXp}, {S(sK)}, s{t0} offen offset:16 sc1", 'vm', ('gz', 0))])
    for i in range(4):
        gl.append([Op(f"buffer_load_dwordx4 {vr(48+4*i,4)}, v{vXv}, {S(sK)}, s{t0} offen sc1", 'vm', ('gw', 0)), Op(f"s_add_u32 s{t0}, s{t0}, {4*KVS}")])
    for u in range(24):
        items = []
        if u + P1 < 16:
            for i in range(4):
                pre = [Op(f"s_mov_b32 s{sAoff}, {(u+P1)*2048}")] if (i == 0 and (u + P1) % 2 == 0) else []
                items.append(pre + [a_load('1', vA1, 2, u + P1, u + P1, i)])
        ws = list(per.get(u, []))
        merged = []
        while items or ws:
            if items: merged.append(items.pop(0))
            if ws: merged.append(ws.pop(0))
        n = len(merged)
        for k, grp in enumerate(merged):
            pos = 1 + (k * 30) // max(n, 1)
            if len(grp) > 1: p.at(u, pos - 1, grp[:-1])
            p.at(u, pos, grp[-1:])
    b = OpList()
    g.stamp("ph1", b)
    E = 144; PK = 176
    brk = list(per['brk'])
    for grp in brk[:2]: b.extend(grp)
    b(f"v_add_u32 v{vT}, {SCR}, v{vXw}")
    b(f"v_add_u32 v{vXw}, {XV}, v{vXw}")
    m_ = OpList()
    for i in range(4):
        phi_ops(m_, [acc1(0, i), acc1(0, i) + 2, acc1(1, i), acc1(1, i) + 2], E)
        for j in range(4):
            r = acc1(j >> 1, i) + 2 * (j & 1)
            m_(f"v_cvt_pk_bf16_f32 v{PK+4*i+j}, v{r}, v{r+1}")
        m_(f"ds_write_b128 v{vT}, {vr(PK+4*i,4)} offset:{i*1024}")
        if i == 0: m_("s_barrier")
        for j in range(4):
            r = acc1(j >> 1, 4 + i) + 2 * (j & 1)
            m_(f"v_cvt_pk_bf16_f32 v{PK+16+4*i+j}, v{r}, v{r+1}")
        m_(f"ds_write_b128 v{vXw}, {vr(PK+16+4*i,4)} offset:{i*1024}")
    interleave(b, m_, brk[2:], 10)
    for j in range(4): b(f"v_mov_b32 v{E+j}, 0x3f803f80")
    b("s_waitcnt lgkmcnt(0)")
    b("s_barrier")
    rdreg = lambda w, i: (w * 12 + i * 4) if w < 2 else (48 + (w - 2) * 12 + i * 4)
    for w in range(4):
        b(f"ds_read_b128 {vr(rdreg(w,0),4)}, v{vXp} offset:{w*4096}")
        b(f"ds_read_b128 {vr(rdreg(w,1),4)}, v{vXp} offset:{w*4096+1024}")
        b(f"ds_read_b128 {vr(rdreg(w,2),4)}, v{vXv} offset:{w*4096}")
    KV = 148
    for w in range(4):
        b(f"s_waitcnt lgkmcnt({9-3*w})")
        for db in range(2):
            b(f"v_mfma_f32_16x16x32_bf16 {vr(KV+4*db,4)}, {vr(rdreg(w,db),4)}, {vr(rdreg(w,2),4)}, {'0' if w == 0 else vr(KV+4*db,4)}")
    for w in range(4):
        for db in range(2):
            b(f"v_mfma_f32_16x16x32_bf16 {vr(KV+8+4*db,4)}, {vr(rdreg(w,db),4)}, {vr(E,4)}, {'0' if w == 0 else vr(KV+8+4*db,4)}")
    for j in range(4): b(f"v_cvt_pk_bf16_f32 v{KV+16+j}, v{KV+2*j}, v{KV+2*j+1}")
    b(f"buffer_store_dwordx4 {vr(KV+16,4)}, v{vKs}, {S(sK)}, s{sKV} offen sc1", tag=('st1', 0))
    b("s_mov_b64 exec, 1")
    b(f"buffer_store_dword v223, v{vWs}, {S(sK)}, s{sKV} offen sc1", tag=('st1', 0))
    b("s_mov_b32 exec_lo, 0x00010001")
    b("s_mov_b32 exec_hi, 0x00010001")
    b(f"buffer_store_dwordx4 {vr(KV+8,4)}, v{vZs}, {S(sK)}, s{sKV} offen sc1", tag=('st1', 0))
    b(f"buffer_store_dwordx4 {vr(KV+12,4)}, v{vZs}, {S(sK)}, s{sKV} offen offset:16 sc1", tag=('st1', 0))
    b("s_mov_b64 exec, -1")
    pf_now(b, opt['pf_kv'], "v222")
    b(f"v_and_b32 v{vXp}, 15, v{vLane}")
    b(f"v_mul_u32_u24 v{vXp}, {KVS}, v{vXp}")
    b(f"v_add_u32 v{vXp}, v{vXp}, v{vZs}")
    b(f"v_lshrrev_b32 v{vXv}, 4, v{vLane}")
    b(f"v_mul_u32_u24 v{vXv}, {KVS}, v{vXv}")
    b(f"v_add_u32 v{vXv}, 4352, v{vXv}")
    g.stamp("kvpub", b)
    p.breaks[15] = b
    us = opt['send1']
    gi = us * p.MPS + p.open_pos()
    p.gaps[gi].insert(0, Op("", 'wait_vm', need=('st1', 0, 4)))
    sf = OpList(); send_flags(sf, 1, 16, sHp, 16, sMt1, vT)
    p.gaps[gi + 1].extend(sf)
    pl = OpList(); poll_flags(pl, 1, 16, sId1, vT); g.stamp("sync1", pl)
    late = []
    if up < 24:
        p.breaks[up - 1] = pl
        ngap = (24 - up) * p.MPS
        for k, grp in enumerate(gl):
            pos = k * 2
            if pos < ngap: p.gaps[up * p.MPS + pos].extend(grp)
            else: late.append(grp)
    o.extend(p.first_reads())
    g.loop(p, "p1", p.body())
    if up >= 24:
        o.extend(pl); late = gl
    for grp in late: o.extend(grp)
    g.stamp("ph2")
    PQ = 64
    o("s_nop 4")
    for rb in range(2):
        for h in range(2):
            r0 = acc1(rb, 8 + 2 * h)
            phi_ops(o, [r0, r0 + 2, r0 + 4, r0 + 6], 8)
            for j in range(4): o(f"v_cvt_pk_bf16_f32 v{PQ+(rb*2+h)*4+j}, v{r0+2*j}, v{r0+2*j+1}")
    o(f"s_mov_b32 s{t0+2}, 0x00003f80")
    o(f"s_mov_b32 s{t0+3}, 0x3f800000")
    for m in range(16):
        o.wait_vm(('g', m, 1))
        for j in range(4):
            if m == 0:
                o(f"v_lshlrev_b32 v{96+2*j}, 16, v{GB+j}")
                o(f"v_and_b32 v{96+2*j+1}, 0xffff0000, v{GB+j}")
            else:
                o(f"v_dot2c_f32_bf16 v{96+2*j}, s{t0+2}, v{GB+4*m+j}")
                o(f"v_dot2c_f32_bf16 v{96+2*j+1}, s{t0+3}, v{GB+4*m+j}")
    o(f"v_add_u32 v{vT}, {SCR}, v{vKs}")
    o(f"v_add_u32 v{vT+1}, {SCR}, v{vL16}")
    o.wait_vm(('gz', 0, 2))
    for r in (8, 4, 2, 1): ror_add(o, list(range(8)), r)
    for j in range(4): o(f"v_cvt_pk_bf16_f32 v{104+j}, v{96+2*j}, v{96+2*j+1}")
    o(f"ds_write_b128 v{vT}, v[104:107]")
    for j in range(4): o(f"v_cvt_pk_bf16_f32 v{8+j}, v{2*j}, v{2*j+1}")
    o(f"ds_write_b128 v{vT}, v[8:11] offset:4096")
    o(f"s_lshl_b32 s{t0}, s{sMt1}, 3")
    o(f"s_lshl_b32 s{t0+1}, s{sWave}, 1")
    o(f"s_add_u32 s{t0}, s{t0}, s{t0+1}")
    o(f"s_lshl_b32 s{t0+2}, s{t0}, 6")
    o(f"s_lshl_b32 s{t0}, s{t0}, 15")
    o(f"s_lshl_b32 s{t0+1}, s{sHp}, 11")
    o(f"s_add_u32 s{t0}, s{t0}, s{t0+1}")
    o(f"s_add_u32 s{t0}, s{t0}, {WS_O}")
    o(f"s_add_u32 s{t0+1}, s{t0}, 0x8000")
    o(f"s_lshl_b32 s{t0+3}, s{sHp}, 13")
    o(f"s_add_u32 s{t0+2}, s{t0+2}, s{t0+3}")
    o(f"s_add_u32 s{t0+2}, s{t0+2}, {WS_MU}")
    o("s_waitcnt lgkmcnt(0)")
    o("s_barrier")
    g.stamp("gath")
    for h in range(2):
        o(f"ds_read_b128 {vr(16+4*h,4)}, v{vT+1} offset:{4096+h*2048}")
        o(f"ds_read_b128 {vr(8*h,4)}, v{vT+1} offset:{h*2048}")
        o(f"ds_read_b128 {vr(8*h+4,4)}, v{vT+1} offset:{h*2048+1024}")
    N = 96
    for h in range(2):
        o(f"s_waitcnt lgkmcnt({3-3*h})")
        for rb in range(2):
            r = N + (rb * 2 + h) * 12; pq = vr(PQ + (rb * 2 + h) * 4, 4)
            o(f"v_mfma_f32_16x16x32_bf16 {vr(r+8,4)}, {vr(16+4*h,4)}, {pq}, 0")
            o(f"v_mfma_f32_16x16x32_bf16 {vr(r,4)}, {vr(8*h,4)}, {pq}, 0")
            o(f"v_mfma_f32_16x16x32_bf16 {vr(r+4,4)}, {vr(8*h+4,4)}, {pq}, 0")
    for h in range(2):
        for rb in range(2):
            r = N + (rb * 2 + h) * 12
            o(f"v_add_f32 v{r+8}, s{sC0+2}, v{r+8}")
            o(f"v_rcp_f32 v{r+8}, v{r+8}")
            o("s_nop 0")
            for j in range(4): o(f"v_pk_mul_f32 {vr(r+2*j,2)}, {vr(r+2*j,2)}, {vr(r+8,2)} op_sel_hi:[1,0]")
            for j in range(4): o(f"v_cvt_pk_bf16_f32 v{r+8+j}, v{r+2*j}, v{r+2*j+1}")
            o(f"buffer_store_dwordx4 {vr(r+8,4)}, v{vL16}, {S(sK)}, s{t0+rb} offen offset:{h*1024} sc1", tag=('st2', 0))
    o.wait_vm(('gw', 0, 4))
    for rb in range(2):
        for h in range(2):
            r = N + (rb * 2 + h) * 12
            for j in range(4):
                if h == 0 and j == 0: o(f"v_pk_mul_f32 {vr(24+2*rb,2)}, {vr(r,2)}, {vr(48,2)}")
                else: o(f"v_pk_fma_f32 {vr(24+2*rb,2)}, {vr(r+2*j,2)}, {vr(48+8*h+2*j,2)}, {vr(24+2*rb,2)}")
    o("v_add_f32 v24, v24, v25")
    o("v_add_f32 v26, v26, v27")
    o(f"v_lshlrev_b32 v{vT}, 2, v{vLane}")
    o("s_nop 0")
    o("v_permlane16_swap_b32 v24, v26")
    o("s_nop 0")
    o("v_add_f32 v24, v24, v26")
    swap_add(o, [24], [25], 32)
    o("s_mov_b32 exec_hi, 0")
    o(f"buffer_store_dword v24, v{vT}, {S(sK)}, s{t0+2} offen sc1", tag=('st2', 0))
    o("s_mov_b64 exec, -1")
    g.stamp("ost")
    vXr = 200; vR2 = 208; vRl2 = 212; vA2 = [216, 217]; vX = 218; vT2 = 204
    XL2 = (23 % NS1) * 16384
    for grp in per.get('late', []): o.extend(grp)
    rowtile_lane(o, vX, vXr, vT2, XL2, t0 + 2)
    for i in range(4):
        o(f"s_add_u32 m0, s{t0+2}, {i*1024}")
        o(f"s_mov_b32 s{t0+1}, {i*8*2048}")
        o(f"buffer_load_dwordx4 v{vX+(i&1)}, {S(sX)}, s{t0+1} offen lds")
    o(f"s_lshl_b32 s{t0}, s{sMt1}, 4")
    o.wait_vm(('st2', 0, 5))
    o("s_barrier")
    send_flags(o, 2, 16, t0, 1, sHp, vT)
    g.stamp("sent2")
    pf_now(o, opt['pf_s2'], "v222")
    o(f"s_lshl_b32 s{t0}, s{sRb2}, 15")
    o(f"s_add_u32 s{t0}, s{t0}, {WS_O}")
    o(f"v_add_u32 v{vA2[0]}, s{t0}, v{vL16}")
    o(f"v_add_u32 v{vA2[1]}, 0x8000, v{vA2[0]}")
    for b_ in range(4): o(f"v_mov_b32 v{vRl2+b_}, v{vRl1+b_}")
    STG3 = 28672; NS3 = 5; PW3 = 3; P3 = opt['P3']; D3 = 4; R03 = 3
    vA3 = [224, 225, 226, 227]; vD3 = 228; vR3 = 235; vRl3 = 236; vT3 = 237; vD4 = 242; vRs = 244; vS3 = 252
    o(f"s_and_b32 s{t0+1}, s{sWave}, 1")
    o(f"s_mul_i32 s{t0+1}, s{t0+1}, {32*7168}")
    o(f"s_mul_i32 s{t0+2}, s{sNt3}, 224")
    o(f"s_add_u32 s{t0+1}, s{t0+1}, s{t0+2}")
    o(f"s_and_b32 s{t0+2}, s{sNt3}, 1")
    o(f"s_lshl_b32 s{t0+2}, s{t0+2}, 1")
    for i in range(7):
        o(f"v_add_u32 v{vT3}, {i*64}, v{vLane}")
        o(f"v_mul_u32_u24 v{vT3+1}, 4682, v{vT3}")
        o(f"v_lshrrev_b32 v{vT3+1}, 16, v{vT3+1}")
        o(f"v_mul_u32_u24 v{vT3+2}, 14, v{vT3+1}")
        o(f"v_sub_u32 v{vT3+2}, v{vT3}, v{vT3+2}")
        o(f"v_add_u32 v{vT3+2}, s{t0+2}, v{vT3+2}")
        o(f"v_subrev_u32 v{vT3}, 14, v{vT3+2}")
        o(f"v_min_u32 v{vT3+2}, v{vT3+2}, v{vT3}")
        o(f"v_mul_u32_u24 v{vT3+1}, 7168, v{vT3+1}")
        o(f"v_lshl_add_u32 v{vT3+1}, v{vT3+2}, 4, v{vT3+1}")
        o(f"s_sub_u32 s{t0+3}, s{t0+1}, {(i%4)*1024}")
        o(f"v_add_u32 v{vD3+i}, s{t0+3}, v{vT3+1}")
    o(f"s_mul_i32 s{sM0}, s{sWave}, 7168")
    o(f"s_add_u32 s{sM0end}, s{sM0}, {NS3*STG3}")
    o(f"s_add_u32 s{sM0}, s{sM0}, {R03*STG3}")
    srd_gu(o, sW)
    o(f"s_mov_b32 s{sWoff}, 0")
    def w3_dma(t, i):
        pre = [Op(f"s_add_u32 m0, s{sM0}, {(i//4)*4096}")] if i % 4 == 0 else []
        return pre, Op(f"buffer_load_dwordx4 v{vD3+i}, {S(sW)}, s{sWoff} offen offset:{(i%4)*1024} lds", 'vm', ('W3', t))
    def wadv(step, stg, ns):
        return [[Op(f"s_add_u32 s{sWoff}, s{sWoff}, {step}")], [Op(f"s_add_u32 s{sM0}, s{sM0}, {stg}")],
                [Op(f"s_cmp_ge_u32 s{sM0}, s{sM0end}"), Op(f"s_cselect_b32 s{sTmp}, {ns*stg}, 0")], [Op(f"s_sub_u32 s{sM0}, s{sM0}, s{sTmp}")]]
    def rdadv(stg, ns, base=0):
        return [[Op(f"s_add_u32 s{sRd}, s{sRd}, {stg}")], [Op(f"s_cmp_ge_u32 s{sRd}, {base+ns*stg}"), Op(f"s_cselect_b32 s{sRd}, {base}, s{sRd}")]]
    def w3_groups(t):
        r = []
        for i in range(7):
            pre, d = w3_dma(t, i)
            r.append((pre + [Op("s_nop 0")] if pre else []) + [d])
        r[-1] = r[-1] + [x for grp in wadv(64 * 7168, STG3, NS3) for x in grp]
        return r
    poll_flags(o, 2, 16, sId2, vT2)
    g.stamp("sync2")
    acc2 = lambda rb, nb: (rb * 4 + nb) * 4
    b2 = lambda u: ((24 + u // 2) % NS1) * 16384
    def frag2(u, k):
        return dict(acc=lambda rb: acc2(rb, k), aslot=u, swap=False, first=(u == 0), reg=vR2 + k,
                    off=lambda s, j: (b2(u) & 0xffff) + (2 * s + j) * 4096 + (u & 1) * 2048)
    def open2(u):
        ops = []
        if u == 0: ops.append(Op("s_barrier"))
        if u == 0 or (b2(u) >> 16) != (b2(u - 1) >> 16): ops += [Op(f"v_add_u32 v{vR2+b_}, {b2(u) & ~0xffff}, v{vRl2+b_}") for b_ in range(4)]
        return ops
    p = Pipe(ph='2', RB=2, F=4, nst=16, iters=1, PD=4, WR=8, aA=0, aW=64, wp='v', sal_win=0, last_rd=False,
             frag=frag2, open_ops=open2, rd_pos=lambda j: j, a_need=lambda u: [('A2', u, 4)])
    p.layout_reads()
    P2 = opt['P2']
    for u in range(P2):
        if u % 2 == 0: o(f"s_mov_b32 s{sAoff}, {u*2048}")
        for i in range(4): o.append(a_load('2', vA2, 2, u, u, i))
    H = 32
    for rb in range(2):
        for nb in range(4): o(f"ds_read_b64 {vr(H+(rb*4+nb)*2,2)}, v{vXr+nb} offset:{rb*2048}")
    o(f"v_and_b32 v{vT2}, 31, v{vLane}")
    o(f"v_lshlrev_b32 v{vT2}, 2, v{vT2}")
    o(f"v_lshrrev_b32 v{vT2+1}, 5, v{vLane}")
    o(f"v_lshl_add_u32 v{vT2+1}, v{vT2+1}, 16, v{vT2}")
    o(f"s_lshl_b32 s{t0}, s{sRb2}, 6")
    o(f"s_add_u32 s{t0+1}, s{t0}, {WS_MU}")
    o(f"s_add_u32 s{t0+2}, s{t0}, {WS_MX}")
    o(f"s_or_b32 s{t0+3}, s2, s{sWave}")
    o("s_cbranch_scc1 L_noepoch")
    o(f"v_mov_b32 v{vT2+2}, {WS_EP}")
    o(f"v_mov_b32 v{vT2+3}, s{sNonce}")
    o("s_mov_b64 exec, 1")
    o(f"buffer_store_dword v{vT2+3}, v{vT2+2}, {S(sK)}, 0 offen sc1", count=False)
    o("s_mov_b64 exec, -1")
    o.label("L_noepoch")
    for u in range(16 - P2):
        for i in range(4):
            if i == 0 and (u + P2) % 2 == 0: p.at(u, 0, [Op(f"s_mov_b32 s{sAoff}, {(u+P2)*2048}")])
            p.at(u, 1 + 4 * i, [a_load('2', vA2, 2, u + P2, u + P2, i)])
    um = 16 - P2
    for i in range(8):
        p.at(um, 1 + i, [Op(f"buffer_load_dword v{128+i}, v{vT2+1}, {S(sK)}, s{t0+1} offen sc1", 'vm', ('mu', 0)), Op(f"s_add_u32 s{t0+1}, s{t0+1}, 8192")])
    p.at(um, 9, [Op(f"buffer_load_dword v136, v{vT2}, {S(sK)}, s{t0+2} offen sc1", 'vm', ('mu', 0))])
    ub = max(10, um)
    if opt['w3loop']:
        p.at(ub, 10, [Op("s_barrier")])
        grps = [x for t in range(opt['w3loop']) for x in w3_groups(t)]
        span = (16 - ub) * 16 - 12
        for k, grp in enumerate(grps): p.gaps[ub * 16 + 11 + (k * span) // len(grps)].extend(grp)
    o.extend(p.first_reads())
    g.loop(p, "p2", p.body())
    g.stamp("p2end")
    T = 48
    o.wait_vm(('mu', 0, 9))
    for i in range(3): o(f"v_pk_add_f32 v[128:129], v[128:129], {vr(130+2*i,2)}")
    o("v_add_f32 v128, v128, v129")
    swap_add(o, [128], [129], 32)
    o("v_add_f32 v128, v128, v136")
    o("v_mov_b32 v130, v128")
    o(f"s_lshl_b32 s{t0+1}, s{sRb2}, 15")
    o(f"s_lshl_b32 s{t0+2}, s{sNt2}, 11")
    o("v_permlane16_swap_b32 v128, v130")
    o(f"s_add_u32 s{t0+1}, s{t0+1}, s{t0+2}")
    o(f"s_add_u32 s{t0+1}, s{t0+1}, {WS_H}")
    o(f"s_add_u32 s{t0+2}, s{t0+1}, 0x8000")
    for i in range(16):
        rb = i // 8
        o(f"v_lshlrev_b32 v{T}, 16, v{H+i}")
        o(f"v_and_b32 v{T+1}, 0xffff0000, v{H+i}")
        o(f"v_pk_add_f32 {vr(64+2*i,2)}, {vr(2*i,2)}, {vr(T,2)}")
        o(f"v_pk_add_f32 {vr(2*i,2)}, {vr(64+2*i,2)}, {vr(128+2*rb,2)} op_sel_hi:[1,0] neg_lo:[0,1] neg_hi:[0,1]")
        o(f"v_cvt_pk_bf16_f32 v{H+i}, v{2*i}, v{2*i+1}")
        if i % 4 == 3:
            j = i // 4
            o(f"buffer_store_dwordx4 {vr(H+4*j,4)}, v{vL16}, {S(sK)}, s{t0+1+(j>>1)} offen offset:{(j&1)*1024} sc1", tag=('st3', 0))
    for rb in range(2):
        o(f"v_pk_mul_f32 {vr(52+2*rb,2)}, {vr(16*rb,2)}, {vr(16*rb,2)}")
        for i in range(1, 8): o(f"v_pk_fma_f32 {vr(52+2*rb,2)}, {vr(16*rb+2*i,2)}, {vr(16*rb+2*i,2)}, {vr(52+2*rb,2)}")
    o("v_add_f32 v52, v52, v53")
    o("v_add_f32 v54, v54, v55")
    o(f"s_lshl_b32 s{t0+1}, s{sNt2}, 13")
    o(f"s_add_u32 s{t0+1}, s{t0+1}, s{t0}")
    o("v_permlane16_swap_b32 v52, v54")
    o(f"s_add_u32 s{t0+1}, s{t0+1}, {WS_SQ}")
    o("v_add_f32 v52, v52, v54")
    swap_add(o, [52], [53], 32)
    o("s_mov_b32 exec_hi, 0")
    o(f"buffer_store_dword v52, v{vT2}, {S(sK)}, s{t0+1} offen sc1", tag=('st3', 0))
    o("s_mov_b64 exec, -1")
    g.stamp("hst")
    for i in range(16):
        o(f"v_cvt_pk_bf16_f32 v{T+2}, v{64+2*i}, v{64+2*i+1}")
        o(f"v_accvgpr_write_b32 a{240+i}, v{T+2}")
    o(f"v_mov_b32 v{vD4}, v{vD2}")
    o(f"v_mov_b32 v{vD4+1}, v{vD2+1}")
    for i in range(28, 112): o(f"v_pk_mov_b32 {vr(2*i,2)}, 0, 0")
    o(f"s_lshr_b32 s{t0}, s{sMt2}, 1")
    o(f"s_lshl_b32 s{t0}, s{t0}, 5")
    o(f"s_and_b32 s{t0+1}, s{sId2}, 31")
    o.wait_vm(('st3', 0, 5))
    o("s_barrier")
    send_flags(o, 3, 32, t0, 1, t0 + 1, vT3)
    g.stamp("sent3")
    for t in range(opt['w3loop'], PW3):
        for grp in w3_groups(t): o.extend(grp)
    pf_now(o, opt['pf_s3'], "a176")
    for i in range(28): o(f"v_pk_mov_b32 {vr(2*i,2)}, 0, 0")
    o(f"s_lshl_b32 s{t0}, s{sMt3}, 4")
    o(f"s_lshl_b32 s{t0+1}, s{sWave}, 2")
    o(f"s_add_u32 s{t0}, s{t0}, s{t0+1}")
    o(f"s_lshl_b32 s{t0+1}, s{t0}, 15")
    o(f"s_add_u32 s{t0+1}, s{t0+1}, {WS_H}")
    o(f"v_add_u32 v{vA3[0]}, s{t0+1}, v{vL16}")
    for rb in range(1, 4): o(f"v_add_u32 v{vA3[rb]}, {rb*0x8000}, v{vA3[0]}")
    o(f"v_lshrrev_b32 v{vT3}, 2, v{vLane}")
    o(f"v_mul_u32_u24 v{vT3}, 224, v{vT3}")
    o(f"v_and_b32 v{vT3+1}, 3, v{vLane}")
    o(f"v_lshl_add_u32 v{vRl3}, v{vT3+1}, 3, v{vT3}")
    o(f"s_mov_b32 s{sAoff}, 0"); o(f"s_mov_b32 s{sRd}, {R03*STG3}")
    o(f"s_mul_i32 s{t0+1}, s{sNt3}, 7")
    o(f"s_add_u32 s{t0+1}, s{t0+1}, 1")
    o(f"s_lshr_b32 s{t0+1}, s{t0+1}, 1")
    o(f"s_mul_i32 s{t0+2}, s{t0}, 112")
    o(f"s_add_u32 s{t0+1}, s{t0+1}, s{t0+2}")
    o(f"s_lshl_b32 s{t0+1}, s{t0+1}, 10")
    o(f"s_add_u32 s{t0+1}, s{t0+1}, {WS_HH}")
    o(f"v_add_u32 v{vS3}, s{t0+1}, v{vL16}")
    o(f"s_and_b32 s{t0+2}, s{sNt3}, 1")
    o(f"s_mul_i32 s{t0+2}, s{t0+2}, {8-1024-3072}")
    o(f"s_add_u32 s{t0+2}, s{t0+2}, 3072")
    o(f"v_add_u32 v{vS3+1}, s{t0+2}, v{vS3}")
    o(f"s_lshl_b32 s{sSt}, s{t0}, 6")
    o(f"s_add_u32 s{sSt}, s{sSt}, {WS_SQ}")
    o(f"s_lshl_b32 s{sM4}, s{sWave}, 11")
    srd(o, sX, pD, 3584 * 2048)
    for rb in range(1, 4): o(f"s_mov_b32 s{sC0+rb}, {rb*112*1024}")
    lp = []
    for (kind, st0, n), sd in zip(opt['pf_loop'], (sPfA, sPfB)):
        nl = pf_off(o, kind, st0, n, sd)
        x = OpList(); pf_load(x, nl, sd, sW if kind == 'gu' else sX, "a176")
        x(f"s_add_u32 s{sd}, s{sd}, {n * (64 * 7168 if kind == 'gu' else 131072)}")
        lp.append(x)
    o(f"s_lshl_b32 s{t0}, s{sMt3}, 5")
    o(f"s_add_u32 s{t0}, s{t0}, s{sNt3}")
    poll_flags(o, 3, 32, t0, vT3)
    g.stamp("sync3")
    acc3 = lambda rb, nb: (rb * 14 + nb) * 4
    off3 = lambda k: (lambda s, j: (k & 1) * 14336 + (32 * s + 16 * j) * 224 + (k >> 1) * 32)
    def frag3(u, k): return dict(acc=lambda rb: acc3(rb, k), aslot=u % D3, swap=False, reg=vR3, off=off3(k))
    open3 = lambda u: [Op("", 'wait_vm', need=('W3', u, 7)), Op("s_barrier"), Op(f"v_add_u32 v{vR3}, s{sRd}, v{vRl3}")]
    p = Pipe(ph='3', RB=4, F=14, nst=D3, iters=3, PD=3, WR=4, aA=0, aW=128, sal_win=6, dA=D3, dW=D3,
             frag=frag3, open_ops=open3, rd_pos=lambda j: 2 * j, a_need=lambda u: [('A3', u, 8)])
    p.layout_reads()
    a3 = lambda u, i: a_load('3', vA3, 4, u % D3, u, i)
    for u in range(P3):
        for i in range(8): o.append(a3(u, i))
        if u % 2 == 1: o(f"s_add_u32 s{sAoff}, s{sAoff}, 4096")
    o(f"v_lshlrev_b32 v{vT3}, 2, v{vLane}")
    for i in range(16):
        o(f"buffer_load_dword a{160+i}, v{vT3}, {S(sK)}, s{sSt} offen sc1", tag=('sq', 0))
        o(f"s_add_u32 s{sSt}, s{sSt}, 8192")
    for u in range(D3):
        for k in range(15):
            pos = 1 + 2 * ((k * 7) // 2)
            i = k // 2
            if k % 2 == 0:
                p.at(u, pos, [a3(u + P3, i)])
                if i == 7 and (u + P3) % 2 == 1: p.scalar(u, pos, [Op(f"s_add_u32 s{sAoff}, s{sAoff}, 4096")])
            else:
                pre, d = w3_dma(u + PW3, i)
                p.at(u, pos - 2, pre); p.at(u, pos, [d])
                if i == 6:
                    for grp in wadv(64 * 7168, STG3, NS3): p.scalar(u, pos, grp)
        for grp in rdadv(STG3, NS3): p.scalar(u, p.open_pos(), grp)
    rs = OpList()
    rs(f"v_accvgpr_read_b32 v{vT3}, a160")
    for i in range(1, 16):
        rs(f"v_accvgpr_read_b32 v{vT3+1}, a{160+i}")
        rs(f"v_add_f32 v{vT3}, v{vT3}, v{vT3+1}")
    rs(f"v_mov_b32 v{vT3+1}, {hex(f2u(1e-5))}")
    rs(f"v_fmac_f32 v{vT3+1}, {hex(f2u(1/1024))}, v{vT3}")
    rs(f"v_rsq_f32 v{vT3}, v{vT3+1}")
    rs(f"v_and_b32 v{vT3+2}, 15, v{vLane}")
    rs(f"v_mul_f32 v{vT3+1}, v{vT3+1}, v{vT3}")
    rs(f"v_mul_f32 v{vT3}, 0xbfb8aa3b, v{vT3}")
    rs(f"v_lshlrev_b32 v{vT3+2}, 2, v{vT3+2}")
    for rb in range(4):
        rs(f"ds_bpermute_b32 v{vRs+2*rb}, v{vT3+2}, v{vT3} offset:{rb*64}")
        rs(f"ds_bpermute_b32 v{vRs+2*rb+1}, v{vT3+2}, v{vT3+1} offset:{rb*64}")
    for k, op in enumerate(rs): p.at(3, 3 + 2 * k, [op])
    for k, x in enumerate(lp): p.at(opt.get('pf_u', 0), opt.get('pf_pos', [103, 105])[k], x)
    o.extend(p.first_reads())
    for grp in rdadv(STG3, NS3): o.extend(grp)
    g.loop(p, "p3", p.body())
    g.stamp("p3loop")
    G0 = opt['G0']
    seq = [(t, k) for t in (12, 13, 14) for k in range(G0)] + [(15, k) for k in range(G0)]
    for j in range(G0 // 2, 7): seq += [(t, k) for t in (12, 13, 14, 15) for k in (2 * j, 2 * j + 1)]
    treg = {12: vR3, 13: vT3, 14: vT3 + 1, 15: vT3 + 2}
    def frag3t(u, f):
        t, k = seq[f]
        return dict(acc=lambda rb: acc3(rb, k), aslot=t % D3, swap=False, reg=treg[t], off=off3(k))
    open_at = {}; need_at = {0: [('A3', 12, 8)]}
    for t in (13, 14, 15):
        f = seq.index((t, 0))
        open_at[f] = [Op("", 'wait_vm', need=('W3', t, 7)), Op("s_barrier")]
        need_at[f] = [('A3', t, 8)]
    p = Pipe(ph='3', RB=4, F=56, nst=1, iters=1, PD=3, WR=4, aA=0, aW=128, sal_win=6, f0=168, last_rd=False,
             frag=frag3t, open_at=open_at, need_at=need_at, rd_pos=lambda j: (0, 0, 0, 7)[j], a_need=lambda u: [])
    p.layout_reads()
    for t in (13, 14, 15): p.at(0, 2 * (t - 13) + 1, [Op(f"v_add_u32 v{treg[t]}, {((t + R03) % NS3) * STG3}, v{vRl3}")])
    tl = []
    for u in range(12 + P3, 16):
        grp = [[a3(u, i)] for i in range(8)]
        if u % 2 == 1 and u < 15: grp[-1].append(Op(f"s_add_u32 s{sAoff}, s{sAoff}, 4096"))
        if u == 15: tl += [x for x in w3_groups(15)]
        tl += grp
    NS4 = 18; PW4 = opt['PW4']; P4 = opt['P4']; D4 = 8; B4 = 16384; R04 = 12
    def w4_dma(t, hf): return Op(f"buffer_load_dwordx4 v{vD4+hf}, {S(sX)}, s{sWoff} offen offset:{hf*1024} lds", 'vm', ('W4', t))
    def w4_groups(t):
        return [[Op(f"s_add_u32 m0, s{sM4}, {B4 + ((t + R04) % NS4) * 8192}"), Op(f"s_mov_b32 s{sWoff}, {t*131072}"), w4_dma(t, 0)], [w4_dma(t, 1)]]
    for k, grp in enumerate(tl): p.at(0, 2 + 4 * k, grp)
    gw = max(2 + 4 * len(tl), (seq.index((13, 0)) - 3) * 8 + 2)
    for k, grp in enumerate([x for t in range(6) for x in w4_groups(t)]): p.at(0, gw + 4 * k, grp)
    x = OpList()
    for kind, st0, n in opt['pf_tail']:
        nl = pf_off(x, kind, st0, n, 56); pf_load(x, nl, 56, sX, "a176")
    p.at(0, gw + 4 * 12, x)
    def epi(e, j, pk):
        for rb in range(4):
            GG = acc3(rb, 2 * j); U = GG + 4
            if pk:
                for r in range(2): e(f"v_pk_mul_f32 {vr(GG+2*r,2)}, {vr(GG+2*r,2)}, {vr(vRs+2*rb,2)} op_sel_hi:[1,0]")
            else:
                for r in range(4): e(f"v_mul_f32 v{GG+r}, v{GG+r}, v{vRs+2*rb}")
            for r in range(4): e(f"v_exp_f32 v{GG+r}, v{GG+r}")
            if pk:
                for r in range(2): e(f"v_pk_fma_f32 {vr(GG+2*r,2)}, {vr(GG+2*r,2)}, {vr(vRs+2*rb,2)}, {vr(vRs+2*rb,2)} op_sel:[0,1,1] op_sel_hi:[1,1,1]")
            else:
                for r in range(4): e(f"v_fma_f32 v{GG+r}, v{GG+r}, v{vRs+2*rb+1}, v{vRs+2*rb+1}")
            for r in range(4): e(f"v_rcp_f32 v{GG+r}, v{GG+r}")
            if pk:
                for r in range(2): e(f"v_pk_mul_f32 {vr(U+2*r,2)}, {vr(U+2*r,2)}, {vr(GG+2*r,2)}")
            else:
                for r in range(4): e(f"v_mul_f32 v{U+r}, v{U+r}, v{GG+r}")
            P0 = acc3(rb, 2 * (j & ~1)) + (j & 1) * 2
            for r in range(2): e(f"v_cvt_pk_bf16_f32 v{P0+r}, v{U+2*r}, v{U+2*r+1}")
            so = f"s{sC0+rb}" if rb else "0"
            if j & 1: e(f"buffer_store_dwordx4 {vr(P0-2,4)}, v{vS3}, {S(sK)}, {so} offen offset:{(j>>1)*1024} sc1", tag=('st4', 0))
            elif j == 6: e(f"buffer_store_dwordx2 {vr(P0,2)}, v{vS3+1}, {S(sK)}, {so} offen sc1", tag=('st4', 0))
    done = {j: (max(f for f, (t, k) in enumerate(seq) if k // 2 == j) + 1) * 8 for j in range(7)}
    nin = opt.get('epi_in', 6)
    gs = done[0] + 4
    for j in range(nin):
        e = OpList(); epi(e, j, False)
        lo = max(gs, done[j] + 4)
        hi = lo + (p.NM - lo) // (nin - j)
        gs = fill_valu(p, e, lo, hi)
    g.loop(p, "p3t", p.body())
    g.stamp("p3end")
    o("s_nop 3")
    for j in range(nin, 7): epi(o, j, True)
    g.stamp("hhst")
    vA4 = [224, 225]; vR4 = 228; vRl4 = 232; vX = 236; vXr = 244; vT = 248
    o(f"s_mul_i32 s{t0}, s{sRb2}, {3584*32}")
    o(f"s_add_u32 s{t0}, s{t0}, {WS_HH}")
    o(f"v_add_u32 v{vA4[0]}, s{t0}, v{vL16}")
    o(f"v_add_u32 v{vA4[1]}, {3584*32}, v{vA4[0]}")
    rd128_lane(o, vRl4, vT)
    rowtile_lane(o, vX, vXr, vT, 0, sSt)
    srd(o, sA, pWS, WS_SIZE)
    srd(o, sW, pOUT, 4 << 20)
    o(f"s_add_u32 s{sM0end}, s{sM4}, {B4 + NS4*8192}")
    o(f"s_add_u32 s{sM0}, s{sM4}, {B4 + ((PW4 + R04) % NS4) * 8192}")
    o(f"s_mov_b32 s{sAoff}, 0"); o(f"s_mov_b32 s{sRd}, {B4 + R04*8192}")
    o(f"s_lshl_b32 s{t0}, s{sMt3}, 5")
    o.wait_vm(('st4', 0, 16))
    o("s_barrier")
    send_flags(o, 4, 32, t0, 1, sNt3, vT)
    g.stamp("sent4")
    for t in range(6, PW4):
        for grp in w4_groups(t): o.extend(grp)
    o(f"s_mov_b32 s{sWoff}, {PW4*131072}")
    for i in range(16): o(f"v_pk_mov_b32 {vr(2*i,2)}, 0, 0")
    poll_flags(o, 4, 32, sId2, vT)
    g.stamp("sync4")
    def frag4(u, k): return dict(acc=lambda rb: acc2(rb, k), aslot=u % D4, swap=False, reg=vR4 + k, off=lambda s, j: (2 * s + j) * 2048)
    open4 = lambda u: [Op("", 'wait_vm', need=('W4', u, 2)), Op("s_barrier")] + [Op(f"v_add_u32 v{vR4+b_}, s{sRd}, v{vRl4+b_}") for b_ in range(4)]
    p = Pipe(ph='4', RB=2, F=4, nst=D4, iters=56 // D4, PD=4, WR=8, aA=0, aW=128, sal_win=3, dA=D4, dW=D4,
             frag=frag4, open_ops=open4, rd_pos=lambda j: j, a_need=lambda u: [('A4', u, 4)])
    p.layout_reads()
    a4 = lambda u, i: a_load('4', vA4, 2, u % D4, u, i, sA)
    for u in range(P4):
        for i in range(4): o.append(a4(u, i))
        if u % 2 == 1: o(f"s_add_u32 s{sAoff}, s{sAoff}, 4096")
    for u in range(D4):
        order = [('W', 0), ('A', 0), ('A', 1), ('W', 1), ('A', 2), ('A', 3)]
        for k, (kind, i) in enumerate(order):
            pos = 2 + (k * 5) // 2
            if kind == 'A':
                p.at(u, pos, [a4(u + P4, i)])
                if i == 3:
                    if (u + P4) % 2 == 1: p.scalar(u, pos, [Op(f"s_add_u32 s{sAoff}, s{sAoff}, 4096")])
                    if u + P4 == D4 - 1: p.scalar(u, pos, [Op(f"s_cmp_eq_u32 s{sCnt}, 1"), Op(f"s_cselect_b32 s{sA+2}, 0, s{sA+2}")])
            else:
                if i == 0: p.at(u, pos - 1, [Op(f"s_mov_b32 m0, s{sM0}")])
                p.at(u, pos, [w4_dma(u + PW4, i)])
                if i == 1:
                    for grp in wadv(131072, 8192, NS4): p.scalar(u, pos, grp)
        for grp in rdadv(8192, NS4, B4): p.scalar(u, 1, grp)
    o.extend(p.first_reads())
    for grp in rdadv(8192, NS4, B4): o.extend(grp)
    g.loop(p, "p4", p.body())
    g.stamp("p4end")
    H = 32; T = 48
    for i in range(16): o(f"v_accvgpr_read_b32 v{H+i}, a{240+i}")
    for i in range(16):
        o(f"v_lshlrev_b32 v{T}, 16, v{H+i}")
        o(f"v_and_b32 v{T+1}, 0xffff0000, v{H+i}")
        o(f"v_pk_add_f32 {vr(2*i,2)}, {vr(2*i,2)}, {vr(T,2)}")
        o(f"v_cvt_pk_bf16_f32 v{H+i}, v{2*i}, v{2*i+1}")
        if i % 2 == 1:
            rb, nb = divmod(i // 2, 4)
            o(f"ds_write_b64 v{vXr+nb}, {vr(H+i-1,2)} offset:{rb*2048}")
    o(f"v_add_u32 v{T}, s{sSt}, v{vL16}")
    o("s_waitcnt lgkmcnt(0)")
    for i in range(4): o(f"ds_read_b128 {vr(4*i,4)}, v{T} offset:{i*1024}")
    for i in range(4):
        o(f"s_mov_b32 s{t0+1}, {i*8*2048}")
        o(f"s_waitcnt lgkmcnt({3-i})")
        o(f"buffer_store_dwordx4 {vr(4*i,4)}, v{vX+(i&1)}, {S(sW)}, s{t0+1} offen")
    if opt['stamps']:
        o("s_waitcnt vmcnt(0)")
        g.stamp("end")
        o(f"s_cmp_lg_u32 s{sWave}, 0")
        o("s_cbranch_scc1 L_end")
        o(f"s_lshl_b32 s{t0}, s2, 7")
        o(f"s_add_u32 s{t0}, s{t0}, {WS_STAMP}")
        o("v_mov_b32 v1, 0")
        for i in range(g.nst):
            o(f"v_mov_b32 v{2+i}, s{STREGS[i]}")
            o(f"buffer_store_dword v{2+i}, v1, {S(sK)}, s{t0} offen offset:{4*i}")
    o.label("L_end")
    o("s_endpgm")
    g.flush()
    return g

REF = "sequential_preLN__linear_attn_block__glu_gated_glu__prompt.s.ref"
def assemble(g):
    hdr = open(REF).read().split("; Override launch")[0] if os.path.exists(REF) else ""
    s = hdr + f"; @launch grid=(256,1,1) block=(256,1,1) lds={LDS_TOTAL}\n"
    s += '.amdgcn_target "amdgcn-amd-amdhsa--gfx950"\n'
    s += kernel_header(NAME) + g.out.text() + kernel_desc(NAME, 256, 256)
    return s

if __name__ == "__main__":
    import sys
    out = sys.argv[1] if len(sys.argv) > 1 else "mega2.s"
    open(out, "w").write(assemble(gen()))
```
